```python
import torch

def _softmax(x, axis=-1):
    return torch.softmax(x, dim=axis)
def _gelu(x):
    return torch.nn.functional.gelu(x, approximate="tanh")
def _silu(x):
    return torch.nn.functional.silu(x)
def _sigmoid(x):
    return torch.sigmoid(x)
def _layernorm(x, axis=-1, eps=1e-5):
    m = x.mean(dim=axis, keepdim=True)
    v = x.var(dim=axis, keepdim=True, unbiased=False)
    return (x - m) / torch.sqrt(v + eps)
def _scatter_add(tgt, idx, src, axis=0):
    return tgt.clone().index_add_(axis, idx, src)
def _segment_sum(src, seg, n):
    out = torch.zeros((n,) + src.shape[1:], dtype=src.dtype)
    return out.index_add_(0, seg, src)
def _pad(x, pw):
    flat = tuple(v for pair in reversed(pw) for v in pair)
    return torch.nn.functional.pad(x, flat)

kernel_name = 'standalone__mha_softmax__near_ridge'

def setup_inputs():

    _w = (lambda a: (lambda t: t.to(torch.bfloat16) if t.is_floating_point() else t)(torch.as_tensor(a)))
    B, H, Sq, Sk, D = 8, 16, 368, 512, 256
    return {
        "q": _w((lambda *s: torch.randn(*s, dtype=torch.bfloat16) * 0.8)(B, H, Sq, D)),
        "k": _w((lambda *s: torch.randn(*s, dtype=torch.bfloat16) * 0.8)(B, H, Sk, D)),
        "v": _w((lambda *s: torch.randn(*s, dtype=torch.bfloat16) * 0.05)(B, H, Sk, D)),
    }

def reference(q, k, v):
    scale = q.shape[-1] ** -0.5
    scores = torch.einsum("bhqd,bhkd->bhqk", q, k) * scale
    p = _softmax(scores, axis=-1)
    return torch.einsum("bhqk,bhkd->bhqd", p, v)
```

```python
import re

TRANS = ("v_exp_f32", "v_log_f32", "v_rcp_f32", "v_rsq_f32", "v_sqrt_f32")
VOP3 = ("v_cvt_pk_bf16_f32", "v_max3_f32", "v_accvgpr_read_b32", "v_accvgpr_write_b32", "v_fma_f32",
        "v_lshl_add_u32", "v_and_or_b32", "v_pk_mul_f32", "v_mul_lo_u32", "v_bfe_u32", "v_add3_u32", "v_lshl_or_b32")


def regs_of(tok):
    tok = tok.strip()
    tok = tok.lstrip("-")
    m = re.fullmatch(r"([vas])\[(\d+):(\d+)\]", tok)
    if m:
        return [f"{m.group(1)}{i}" for i in range(int(m.group(2)), int(m.group(3)) + 1)]
    m = re.fullmatch(r"([vas])(\d+)", tok)
    if m:
        return [tok]
    if tok in ("vcc", "m0", "exec"):
        return [tok]
    return []


class I:
    def __init__(self, text, tag=None):
        self.text = text.strip()
        self.tag = tag
        t = self.text.split(";")[0].strip()
        parts = t.split(None, 1)
        self.op = parts[0] if parts else ""
        ops = []
        if len(parts) > 1:
            for x in parts[1].split(","):
                x = x.strip()
                ops.append(x.split()[0] if x else x)
        self.ops = ops
        op = self.op
        self.defs, self.uses = [], []
        self.srcC = []
        self.lds_dma = False
        if op.endswith(":") or op.startswith("."):
            self.kind = "label"
        elif op.startswith("v_mfma"):
            self.kind = "mfma"
            self.defs = regs_of(ops[0])
            self.srcAB = regs_of(ops[1]) + regs_of(ops[2])
            self.srcC = regs_of(ops[3])
            self.uses = self.srcAB + self.srcC
        elif op.startswith("ds_read"):
            self.kind = "ds"
            self.defs = regs_of(ops[0])
            self.uses = regs_of(ops[1])
        elif op.startswith("ds_"):
            self.kind = "ds"
            for o in ops:
                self.uses += regs_of(o)
        elif op.startswith("buffer_load") or op.startswith("global_load"):
            self.kind = "vmem"
            if re.search(r"\blds\b", t):
                self.lds_dma = True
                for o in ops:
                    self.uses += regs_of(o)
                self.uses.append("m0")
            else:
                self.defs = regs_of(ops[0])
                for o in ops[1:]:
                    self.uses += regs_of(o)
        elif op.startswith("buffer_store") or op.startswith("global_store"):
            self.kind = "vmem"
            for o in ops:
                self.uses += regs_of(o)
            self.stdata = regs_of(ops[0])
        elif op.startswith("v_permlane"):
            self.kind = "valu"
            self.defs = regs_of(ops[0]) + regs_of(ops[1])
            self.uses = list(self.defs)
        elif op.startswith("v_"):
            self.kind = "valu"
            if op != "v_nop":
                self.defs = regs_of(ops[0])
                for o in ops[1:]:
                    self.uses += regs_of(o)
                if op.startswith("v_fmac") or "dpp" in op:
                    self.uses += self.defs
        elif op in ("s_waitcnt", "s_barrier", "s_nop", "s_setprio", "s_endpgm", "s_sleep") or op.startswith("s_cbranch") or op == "s_branch":
            self.kind = "sopp"
        elif op.startswith("s_load") or op.startswith("s_mem"):
            self.kind = "smem"
            self.defs = regs_of(ops[0])
            for o in ops[1:]:
                self.uses += regs_of(o)
        elif op.startswith("s_cmp"):
            self.kind = "salu"
            for o in ops:
                self.uses += regs_of(o)
        elif op.startswith("s_"):
            self.kind = "salu"
            self.defs = regs_of(ops[0])
            for o in ops[1:]:
                self.uses += regs_of(o)
        else:
            raise ValueError("unknown op " + text)
        self.trans = op in TRANS
        self.perm = op.startswith("v_permlane")

    def cost(self):
        if self.kind == "vmem" or self.trans or self.perm:
            return 8
        return 4

    def states(self):
        if self.kind == "label":
            return 0
        if self.op == "s_nop":
            return int(self.ops[0]) + 1
        return 1


class Gap:
    def __init__(self, mfma):
        self.mfma = mfma
        self.sc = []
        self.vec = []
        self.wait = None

    def nsc(self):
        return len(self.sc) + (1 if self.wait else 0)

    def used(self):
        return sum(x.cost() for x in self.vec) + 4 * max(0, self.nsc() - 1)

    def fits(self, op):
        if op.kind in ("salu", "sopp", "smem"):
            return self.nsc() == 0
        if self.used() + op.cost() > 8:
            return False
        if op.kind == "ds" and any(x.kind == "ds" for x in self.vec):
            return False
        big = lambda x: x.kind == "valu" and (x.op in VOP3 or "0x" in x.text)
        if big(op) and any(big(x) for x in self.vec):
            return False
        return True

    def add(self, op):
        if op.kind in ("salu", "sopp", "smem"):
            self.sc.append(op)
        elif op.kind == "ds":
            n = 0
            while n < len(self.vec) and self.vec[n].kind == "ds":
                n += 1
            self.vec.insert(n, op)
        else:
            self.vec.append(op)


class Stream:
    def __init__(self):
        self.gaps = []

    def mfma(self, text):
        self.gaps.append(Gap(I(text)))
        return len(self.gaps) - 1

    def place(self, text, g, latest=None, force=False, tag=None):
        op = text if isinstance(text, I) else I(text, tag)
        if force:
            self.gaps[g].add(op)
            return g
        k = g
        while k < len(self.gaps) and (latest is None or k <= latest):
            if self.gaps[k].fits(op):
                self.gaps[k].add(op)
                return k
            k += 1
        if latest is not None:
            cand = range(g, min(latest, len(self.gaps) - 1) + 1)
            k = min(cand, key=lambda x: (self.gaps[x].used(), x))
            self.gaps[k].add(op)
            return k
        return None

    def req_wait(self, g, vm=None, lgkm=None):
        w = self.gaps[g].wait or [None, None]
        if vm is not None:
            w[0] = vm if w[0] is None else min(w[0], vm)
        if lgkm is not None:
            w[1] = lgkm if w[1] is None else min(w[1], lgkm)
        self.gaps[g].wait = w

    def est_cycles(self):
        return sum(max(16, 8 + g.used()) for g in self.gaps)


def wait_text(vm, lgkm):
    s = "s_waitcnt"
    if vm is not None:
        s += f" vmcnt({min(vm, 63)})"
    if lgkm is not None:
        s += f" lgkmcnt({min(lgkm, 15)})"
    return s


def linearize(stream):
    out = []
    for g in stream.gaps:
        out.append(g.mfma)
        if g.wait:
            out.append(I(wait_text(*g.wait)))
        out += g.sc
        out += g.vec
    return out


def auto_lgkm(stream, pending_in=None, minlat=6, verbose=False):
    gaps = stream.gaps
    ds = []
    for x in (pending_in or []):
        ds.append((-1, x))
    for gi, g in enumerate(gaps):
        for x in g.vec:
            if x.kind == "ds":
                ds.append((gi, x))
    import bisect
    dsg = [a for a, _ in ds]
    nbefore = lambda gi: bisect.bisect_left(dsg, gi)
    done = 0
    lastw = {}
    k = 0
    stalls = 0

    def apply_wait(gi):
        nonlocal done
        w = gaps[gi].wait
        if w and w[1] is not None:
            done = max(done, nbefore(gi) - min(w[1], 15))

    def need(idx, gmax):
        nonlocal done, stalls
        if idx < done:
            return
        gl = ds[idx][0]
        assert gmax > gl, ("use of ds result in same gap", ds[idx][1].text)
        gi = gmax
        while gi > gl + 1 and not (gaps[gi].wait or gaps[gi].nsc() == 0):
            gi -= 1
        if not (gaps[gi].wait or gaps[gi].nsc() == 0):
            gi = gmax
        if gi - gl < minlat:
            stalls += 1
            if verbose:
                print("short lds latency", gi - gl, ds[idx][1].text, "gap", gi)
        j = idx
        while j + 1 < len(ds) and ds[j + 1][0] <= gi - (minlat + 2):
            j += 1
        stream.req_wait(gi, lgkm=nbefore(gi) - 1 - j)
        done = max(done, j + 1)

    while k < len(ds) and ds[k][0] == -1:
        for r in ds[k][1].defs:
            lastw[r] = k
        k += 1
    for gi, g in enumerate(gaps):
        m = g.mfma
        for r in m.uses + m.defs:
            if r in lastw:
                if lastw[r] >= done:
                    assert gi > 0, "first mfma needs explicit wait"
                    need(lastw[r], gi - 1)
        apply_wait(gi)
        for x in g.vec:
            for r in x.uses + (x.defs if x.kind != "ds" else []):
                if r in lastw and lastw[r] >= done:
                    need(lastw[r], gi)
            if x.kind == "ds":
                assert ds[k][1] is x
                for r in x.defs:
                    lastw[r] = k
                k += 1
    return [x for _, x in ds[done:]]


def check(insts, name=""):
    errs = []
    n = len(insts)
    pos = []
    c = 0
    for x in insts:
        pos.append(c)
        c += x.states()
    last = {}

    def dist(i, j):
        return pos[j] - pos[i] - insts[i].states()

    dsq, vmq = [], []
    pend = {}
    for j, x in enumerate(insts):
        if x.kind == "label":
            continue
        if x.op == "s_waitcnt":
            m = re.search(r"vmcnt\((\d+)\)", x.text)
            if m:
                k = int(m.group(1))
                vmq = vmq[len(vmq) - k:] if k < len(vmq) and k > 0 else ([] if k == 0 else vmq)
            m = re.search(r"lgkmcnt\((\d+)\)", x.text)
            if m:
                k = int(m.group(1))
                if k == 0:
                    dsq = []
                else:
                    sm = [y for y in dsq if y.kind == "smem"]
                    dd = [y for y in dsq if y.kind != "smem"]
                    dsq = sm + dd[max(0, len(dd) - k):]
            continue
        inq = set(map(id, dsq)) | set(map(id, vmq))
        for r in x.uses + x.defs:
            p = pend.get(r)
            if p is not None and id(p) in inq:
                if r in x.defs and r not in x.uses and p.kind == x.kind and x.kind in ("ds", "vmem"):
                    continue
                errs.append(f"{name}[{j}] {x.text}: {r} still pending from {p.text}")

        def chk(cls, regs, need, why):
            for r in regs:
                i = last.get((cls, r))
                if i is not None and dist(i, j) < need:
                    errs.append(f"{name}[{j}] {x.text}: hazard {why} on {r}: {dist(i, j)} < {need} after {insts[i].text}")
                    return

        if x.kind == "mfma":
            chk("valu_w", x.uses, 2, "valu->mfma")
            chk("mfma_w", x.srcAB, 8, "mfmaD->AB")
            for r in x.srcC:
                i = last.get(("mfma_w", r))
                if i is not None and insts[i].defs != x.srcC and dist(i, j) < 6:
                    errs.append(f"{name}[{j}] {x.text}: mfmaD->partial C")
            if x.srcC != x.defs:
                chk("mfma_w", x.defs, 6, "mfmaD->D waw")
        if x.kind == "valu":
            chk("mfma_w", x.uses + x.defs, 8, "mfmaD->valu")
            chk("mfma_c", x.defs, 3, "mfmaC war")
            if not x.trans:
                chk("trans_w", x.uses, 1, "trans->valu")
            if x.perm or "dpp" in x.op:
                chk("valu_w", x.uses, 2, "valu->perm/dpp")
            if x.op.startswith("v_readfirstlane") or x.op.startswith("v_readlane"):
                chk("valu_w", x.uses, 1, "valu->readlane")
            chk("valu_ws", x.uses, 2, "valu sgpr->valu")
            chk("st_r", x.defs, 2, "store data war")
        if x.kind in ("ds", "vmem"):
            chk("mfma_w", x.uses + x.defs, 8, "mfmaD->mem")
            chk("st_r", x.defs, 1, "store data war")
            chk("trans_w", x.uses, 1, "trans->mem")
        if x.kind == "vmem":
            chk("valu_ws", x.uses, 5, "valu sgpr->vmem")
            if x.lds_dma:
                chk("salu_w", ["m0"], 1, "m0->dma")
        if x.kind == "mfma":
            for r in x.defs:
                last[("mfma_w", r)] = j
                last.pop(("valu_w", r), None)
            for r in x.srcC:
                last[("mfma_c", r)] = j
        if x.kind == "valu":
            for r in x.defs:
                if r[0] in "va" and r != "vcc":
                    last[("valu_w", r)] = j
                    last.pop(("mfma_w", r), None)
                    if x.trans:
                        last[("trans_w", r)] = j
                    else:
                        last.pop(("trans_w", r), None)
                else:
                    last[("valu_ws", r)] = j
        if x.kind == "salu":
            for r in x.defs:
                last[("salu_w", r)] = j
                last.pop(("valu_ws", r), None)
        if x.kind == "vmem" and hasattr(x, "stdata") and len(x.stdata) >= 3:
            for r in x.stdata:
                last[("st_r", r)] = j
        if x.kind in ("ds", "smem"):
            dsq.append(x)
            for r in x.defs:
                pend[r] = x
        if x.kind == "vmem":
            vmq.append(x)
            for r in x.defs:
                pend[r] = x
            if len(vmq) > 63:
                errs.append(f"{name}[{j}] vmcnt overflow")
    return errs
```

```python
import sys, struct, argparse
from fw import *

KNAME = "standalone__mha_softmax__near_ridge_kernel"
QHEAD = 368 * 512
KHEAD = 512 * 512
NSLOT = 9
STG = NSLOT * 16384
STG_W = 2304
FLAGS = STG + 4 * STG_W
LDS = FLAGS + 64

def f2u(x): return struct.unpack("<I", struct.pack("<f", x))[0]

class Cfg:
    CH = 8
    ld = ""
    ldq = None
    st = ""
    stamps = False
    warm_code = False
    verbose = False

def dump(S, a, b):
    for i in range(a, min(b, len(S.gaps))):
        g = S.gaps[i]
        print(i, g.used(), g.wait, [x.op for x in g.sc], [x.text[:28] for x in g.vec], file=sys.stderr)
def vq(b, n=4): return f"v[{b}:{b+n-1}]"
def aq(b, n=4): return f"a[{b}:{b+n-1}]"

def gen(cfg):
    CH = cfg.CH
    TG = CH // 4
    ldq = cfg.ld if cfg.ldq is None else cfg.ldq
    PH = lambda kb, t: 64 + (kb * 3 + t) * 4
    TMP = lambda t: 4 + 4 * t
    NEGM = lambda t: 16 + 4 * t
    TU = lambda kb, t: PH(14, t) if (kb & 1 and kb <= 11) else TMP(t)
    KADDR = lambda w, q: 28 + 4 * w + q
    VADDR = lambda w, j: 40 + 4 * w + j
    KDMA = lambda i: 52 + i
    VDMA = lambda i: 56 + i
    STW, STR, STO, FLG = 60, 61, 62, 63
    RL = lambda t: 1 + t
    MINIT = lambda t: 1 + t
    QA = lambda t, s: (t * 8 + s) * 4
    FSZ = max(CH, 8) * 4
    FR = lambda st, i: 96 + st * FSZ + i * 4
    ONES = 96 + 2 * FSZ
    SREG = lambda i: ONES + 4 + 4 * i
    OA = lambda st, j, t: st * 48 + (j * 3 + t) * 4
    sQ, sK, sV, sO = "s[12:15]", "s[16:19]", "s[20:23]", "s[24:27]"
    sW, sWQ, sROW, sOFF, sMODE = 28, 29, 30, 36, 37
    nst = [0]
    def stamp():
        if not cfg.stamps: return []
        i = nst[0]; nst[0] += 1
        return [f"s_memrealtime s[{40+2*i}:{41+2*i}]"]

    pro = []
    E = lambda *a: pro.extend(a)
    E("s_cmp_ge_u32 s2, 256", "s_cbranch_scc1 L_end")
    E(*stamp())
    E("s_load_dwordx4 s[4:7], s[0:1], 0", "s_load_dwordx4 s[8:11], s[0:1], 16")
    E("v_lshrrev_b32 v1, 6, v0", f"s_mov_b32 s{sMODE}, 0", f"v_readfirstlane_b32 s{sW}, v1")
    E("s_and_b32 s64, s2, 7", "s_lshr_b32 s65, s2, 4", "s_lshl_b32 s65, s65, 3", "s_add_u32 s64, s64, s65",
      "s_bfe_u32 s65, s2, 0x10003",
      "s_mul_i32 s65, s65, 192", f"s_mul_i32 s66, s{sW}, 48", "s_add_u32 s65, s65, s66",
      f"s_lshl_b32 s{sROW}, s65, 9", f"s_lshl_b32 s{sWQ}, s{sW}, 12")
    for i in range(1, 6): E(f"s_add_u32 s{sROW+i}, s{sROW}, {4096*i}")
    E(f"s_mul_i32 s66, s64, {QHEAD}", "s_lshl_b32 s67, s64, 18")
    E(f"s_mov_b32 s14, {QHEAD}", "s_mov_b32 s15, 0x20000", f"s_mov_b32 s18, {KHEAD}", "s_mov_b32 s19, 0x20000",
      f"s_mov_b32 s22, {KHEAD}", "s_mov_b32 s23, 0x20000", f"s_mov_b32 s26, {QHEAD}", "s_mov_b32 s27, 0x20000")
    c = f2u(1.4426950408889634 / 16.0)
    E(f"s_mov_b32 s38, {c:#x}", f"s_mov_b32 s39, {c:#x}")
    E("s_waitcnt lgkmcnt(0)")
    E("s_add_u32 s12, s4, s66", "s_addc_u32 s13, s5, 0", "s_add_u32 s16, s6, s67", "s_addc_u32 s17, s7, 0",
      "s_add_u32 s20, s8, s67", "s_addc_u32 s21, s9, 0", "s_add_u32 s24, s10, s66", "s_addc_u32 s25, s11, 0")
    E("L_restart:")
    E("v_mbcnt_lo_u32_b32 v0, -1, 0", "v_mbcnt_hi_u32_b32 v0, -1, v0")
    QD = lambda p: 240 + p
    E("v_lshrrev_b32 v1, 5, v0", "v_and_b32 v2, 31, v0", "v_xor_b32 v2, v2, v1", "v_lshlrev_b32 v2, 4, v2",
      f"v_lshl_or_b32 v{QD(0)}, v1, 9, v2")
    for p in range(1, 8): E(f"v_xor_b32 v{QD(p)}, {32*p}, v{QD(0)}")
    vm = []
    def dma(voff, srd, soff, off, flag, tag):
        return I(f"buffer_load_dwordx4 v{voff}, {srd}, s{soff} offen offset:{off} {flag} lds", tag)
    for t in range(3):
        for h in range(2):
            E(f"s_add_u32 m0, s{sWQ}, {(3 + 2*t + h) * 16384}")
            if t == 0 and h == 0:
                E(f"s_and_b32 s66, s{sW}, 1")
            elif t == 0 and h == 1:
                E(f"s_lshl_b32 s66, s66, 7")
            else:
                E("s_nop 0")
            for i in range(4):
                E(dma(QD(4*h+i), sQ, sROW + 2*t + h, i*1024, ldq, ("Q", t)))
    E(f"s_or_b32 s66, s66, s{sWQ}")
    for i in range(4): E(f"v_xor_b32 v{KDMA(i)}, s66, v{QD(i)}")
    def tile_ops(i):
        slot = i % NSLOT
        if i < 16:
            so, regs, srd = i * 16384, KDMA, sK
        else:
            vt = i - 16
            so, regs, srd = (vt % 4) * 65536 + (vt // 4) * 128, VDMA, sV
        return ([I(f"s_add_u32 m0, s{sWQ}, {slot*16384}"), I(f"s_mov_b32 s{sOFF}, {so}")],
                [dma(regs(k), srd, sOFF, k*1024, cfg.ld, ("T", i)) for k in range(4)])
    for i in range(3):
        sc, d = tile_ops(i); E(*sc); E(*d)
    if cfg.warm_code:
        E("s_getpc_b64 s[68:69]", f"s_lshl_b32 s66, s{sW}, 14", "v_lshlrev_b32 v1, 7, v0", "v_add_u32 v1, s66, v1")
        E(I("global_load_dword v238, v1, s[68:69]", ("W", 0)))
        E("v_add_u32 v1, 0x2000, v1")
        E(I("global_load_dword v239, v1, s[68:69]", ("W", 0)))
    E("v_and_b32 v1, 15, v0", "v_lshrrev_b32 v2, 4, v0")
    E("v_xor_b32 v3, v1, v2", "v_lshlrev_b32 v3, 4, v3")
    E(f"v_lshl_or_b32 v{KADDR(0,0)}, v1, 9, v3")
    for q in range(1, 4): E(f"v_xor_b32 v{KADDR(0,q)}, {q << 6}, v{KADDR(0,0)}")
    for w in range(1, 3):
        for q in range(4): E(f"v_add_u32 v{KADDR(w,q)}, {w*65536:#x}, v{KADDR(0,q)}")
    QR = lambda q: 248 + q
    E("v_and_b32 v4, 7, v0", "v_lshl_or_b32 v3, v4, 9, v3", "v_bfe_u32 v5, v0, 3, 1", "v_lshl_or_b32 v3, v5, 14, v3",
      f"s_add_u32 s66, s{sWQ}, {3*16384}", f"v_add_u32 v{QR(0)}, s66, v3")
    for q in range(1, 4): E(f"v_xor_b32 v{QR(q)}, {q << 6}, v{QR(0)}")
    E(f"s_mul_i32 s66, s{sW}, {STG_W}", f"s_add_u32 s66, s66, {STG}",
      "v_mul_u32_u24 v5, 144, v1", "v_lshl_add_u32 v5, v2, 3, v5", f"v_add_u32 v{STW}, s66, v5")
    E("v_lshrrev_b32 v6, 3, v0", "v_mul_u32_u24 v5, 144, v6", "v_lshl_add_u32 v5, v4, 4, v5", f"v_add_u32 v{STR}, s66, v5")
    E("v_lshlrev_b32 v5, 4, v4", f"v_lshl_or_b32 v{STO}, v6, 9, v5")
    E("v_lshlrev_b32 v5, 5, v2", f"v_xor_b32 v5, v5, v{STO}", f"s_lshl_b32 s66, s{sW}, 14", f"v_add_u32 v{VDMA(0)}, s66, v5")
    for i in range(1, 4): E(f"v_add_u32 v{VDMA(i)}, {3072*i:#x}, v{VDMA(0)}")
    E("v_lshrrev_b32 v5, 2, v0", "v_and_b32 v7, 3, v6", "v_lshlrev_b32 v7, 5, v7", "v_lshl_or_b32 v5, v5, 7, v7",
      "v_and_b32 v7, 3, v0", f"v_lshl_or_b32 v{VADDR(0,0)}, v7, 3, v5")
    for j in range(1, 4): E(f"v_xor_b32 v{VADDR(0,j)}, {j << 5}, v{VADDR(0,0)}")
    for w in range(1, 3):
        for j in range(4): E(f"v_add_u32 v{VADDR(w,j)}, {w*65536:#x}, v{VADDR(0,j)}")
    E(f"s_lshl_b32 s66, s{sW}, 2", f"s_add_u32 s66, s66, {FLAGS}", f"v_mov_b32 v{FLG}, s66")
    E("v_mov_b32 v5, 0x3f803f80")
    for i in range(4): E(f"v_accvgpr_write_b32 a{ONES+i}, v5")
    for t in range(3): E(f"v_mov_b32 v{MINIT(t)}, 0xff800000")
    def vmwait(insts, tag):
        tags = [x.tag for x in insts if isinstance(x, I) and x.kind == "vmem"]
        idx = max(i for i, x in enumerate(tags) if x == tag)
        return len(tags) - 1 - idx
    RAW = 64
    for t in range(3):
        E(f"s_waitcnt vmcnt({vmwait(pro, ('Q', t))})")
        if t == 0: E(*stamp())
        if t == 2: E(*stamp())
        for s in range(8):
            E(f"ds_read_b128 {vq(RAW + 4*s)}, v{QR(s & 3)} offset:{(s >> 2) * 256}")
        if t < 2:
            for q in range(4): E(f"v_add_u32 v{QR(q)}, 0x8000, v{QR(q)}")
        dl = []
        for i in (3 + 2*t, 4 + 2*t):
            sc, d = tile_ops(i); dl.append(sc + d[:1]); dl += [[x] for x in d[1:]]
        for s in range(8):
            if s < 2: E(f"s_waitcnt lgkmcnt({7 if s == 0 else 0})")
            T0 = 100 + (s & 1) * 8
            for k in range(4):
                r = RAW + 4*s + k
                E(f"v_lshlrev_b32 v{T0+2*k}, 16, v{r}", f"v_and_b32 v{T0+2*k+1}, 0xffff0000, v{r}")
            for k in range(4):
                E(f"v_pk_mul_f32 {vq(T0+2*k, 2)}, {vq(T0+2*k, 2)}, s[38:39]")
            for k in range(4):
                E(f"v_cvt_pk_bf16_f32 v{T0+2*k}, v{T0+2*k}, v{T0+2*k+1}")
            for k in range(4):
                E(f"v_accvgpr_write_b32 a{QA(t,s)+k}, v{T0+2*k}")
            if s >= 1:
                E(*dl.pop(0))
                if s == 7: E(*dl.pop(0))
            if t == 2 and s == 4:
                E(f"s_waitcnt vmcnt({vmwait(pro, ('T', 0))})", "s_barrier")
                for s2 in range(8):
                    E(I(f"ds_read_b128 {aq(FR(0, s2))}, v{KADDR(0, s2 & 3)} offset:{(s2 >> 2) * 256}", ("R", 0)))
    E(f"s_cmp_lg_u32 s{sMODE}, 0", "s_cbranch_scc1 L_maxpass", "L_main:")
    E(*stamp())
    E("s_waitcnt lgkmcnt(0)")

    S = Stream()
    chain_end = {}
    ustart = []
    for u in range(32):
        kb, kt = u >> 1, u & 1
        ustart.append(len(S.gaps))
        for t in range(3):
            D = vq(PH(kb, t) if kt == 0 else TU(kb, t))
            for s in range(8):
                C = D if s else ("0" if u == 0 else vq(NEGM(t)))
                g = S.mfma(f"v_mfma_f32_16x16x32_bf16 {D}, {aq(FR(u & 1, s))}, {aq(QA(t, s))}, {C}")
            chain_end[(u, t)] = g
    ones0 = len(S.gaps)
    LQ = lambda t: NEGM(t)
    ones_end = {}
    for t in range(3):
        for kb in range(16):
            g = S.mfma(f"v_mfma_f32_16x16x32_bf16 {vq(LQ(t))}, {aq(ONES)}, {vq(PH(kb, t))}, {'0' if kb == 0 else vq(LQ(t))}")
        ones_end[t] = g
    NG = 16 // TG
    GPC = 4 // TG
    cstart = {}
    oend = {}
    cu = 0
    for gi in range(NG):
        c, h = gi // GPC, gi % GPC
        for j in range(4):
            cstart[(gi, j)] = len(S.gaps)
            for t in range(3):
                D = aq(OA(c & 1, j, t))
                for k in range(CH):
                    C = "0" if (h == 0 and k == 0) else D
                    g = S.mfma(f"v_mfma_f32_16x16x32_bf16 {D}, {aq(FR(cu & 1, k))}, {vq(PH(h*CH + k, t))}, {C}")
                oend[(c, j, t)] = g
            cu += 1
    UL = 3 * CH
    bars = []
    def lds_off(tile, off):
        a = (tile % NSLOT) * 16384 + off
        return a >> 16, a & 0xffff
    for u in range(1, 32):
        tile, kt = u >> 1, u & 1
        g0 = ustart[u - 1]
        if kt == 0: bars.append((g0, tile, [tile - 1]))
        for s in range(8):
            w, o = lds_off(tile, kt * 8192 + (s >> 2) * 256)
            S.place(f"ds_read_b128 {aq(FR(u & 1, s))}, v{KADDR(w, s & 3)} offset:{o}", g0 + (s & 3) + 8 * (s >> 2), force=True, tag=("R", tile))
    cu = 0
    for gi in range(NG):
        for j in range(4):
            g0 = cstart[(gi, j)] - UL
            if j == 0:
                bars.append((g0, 16 + gi * TG + TG - 1, [15] if gi == 0 else [16 + (gi - 1) * TG + x for x in range(TG)]))
            for k in range(CH):
                tile = 16 + gi * TG + k // 4
                for kt in range(2):
                    w, o = lds_off(tile, (k % 4) * 4096 + kt * 2048)
                    S.place(f"ds_read_b64_tr_b16 {aq(FR(cu & 1, k) + 2 * kt, 2)}, v{VADDR(w, j)} offset:{o}", g0 + 2 * k + kt, force=True, tag=("R", tile))
            cu += 1
    free_at = {}
    for g, need_t, freed in bars:
        S.place("s_barrier", g, force=True)
        S.req_wait(g - 1, vm=63)
        for f in freed: free_at[f] = g
    prev = 0
    for i in range(NSLOT, 32):
        sc, d = tile_ops(i)
        g = max(free_at[i - NSLOT], prev + 1)
        g = S.place(sc[0], g); g = S.place(sc[1], g + 1)
        for x in d:
            if g < ones0:
                while (g % 24) not in (16, 19): g += 1
            g = S.place(x, g); prev = g; g += 2
    eready = {}
    X, Y = PH(15, 0), PH(15, 1)
    for t in range(3):
        r = PH(0, t); x, y = X + t, Y + t
        g = chain_end[(0, t)] + 4
        dl = ustart[1] + 8 * t - 2
        seq = [(f"v_max3_f32 v{x}, v{r}, v{r+1}, v{r+2}", 0), (f"v_max3_f32 v{x}, v{x}, v{r+3}, v{MINIT(t)}", 1), (f"v_mov_b32 v{y}, v{x}", 0),
               (f"v_permlane32_swap_b32 v{x}, v{y}", 2), (f"v_max_f32 v{x}, v{x}, v{y}", 1), (f"v_mov_b32 v{y}, v{x}", 0),
               (f"v_permlane16_swap_b32 v{x}, v{y}", 2), (f"v_max_f32 v{x}, v{x}, v{y}", 1)]
        for txt, d in seq:
            g = S.place(txt, g + d, force=True)
        for k in range(4): g = S.place(f"v_sub_f32 v{NEGM(t)+k}, 0, v{x}", g + (k & 1 ^ 1), force=True)
        assert g <= dl, (g, dl)
        for k in range(4): g = S.place(f"v_sub_f32 v{r+k}, v{r+k}, v{x}", g)
        eready[(0, t)] = g + 1
    eg = {}
    prev = 0
    for u in range(32):
        kb, kt = u >> 1, u & 1
        for t in range(3):
            r = PH(kb, t) if kt == 0 else TU(kb, t)
            g = max(eready.get((u, t), chain_end[(u, t)] + 5), prev)
            for k in range(4):
                g = S.place(f"v_exp_f32 v{r+k}, v{r+k}", g); eg[(u, t, k)] = g
            prev = g
    prev = 0
    for u in range(32):
        kb, kt = u >> 1, u & 1
        for t in range(3):
            r = PH(kb, t) if kt == 0 else TU(kb, t)
            for k in range(2):
                g = max(eg[(u, t, 2*k+1)] + 1, prev)
                g = S.place(f"v_cvt_pk_bf16_f32 v{PH(kb,t)+2*kt+k}, v{r+2*k}, v{r+2*k+1}", g); prev = g
            if kt == 1:
                nxt = [v for v in range(u + 1, 32) if (PH(v >> 1, t) if v & 1 == 0 else TU(v >> 1, t)) == r]
                if nxt: assert g < ustart[nxt[0]] + 8 * t, ("temp quad reuse", u, t, g)
            if kt == 1: assert g < ones0 + 16 * t + kb - 1, "P ready for ones"
    g = 0
    for t in range(3):
        g = S.place(f"v_rcp_f32 v{RL(t)}, v{LQ(t)}", max(ones_end[t] + 8, g))
    g = S.place(f"v_max3_f32 v{TMP(0)}, v{LQ(0)}, v{LQ(1)}, v{LQ(2)}", g + 1)
    g = S.place(f"v_add_f32 v{TMP(0)+1}, v{LQ(0)}, v{LQ(1)}", g + 1)
    g = S.place(f"v_add_f32 v{TMP(0)+1}, v{TMP(0)+1}, v{LQ(2)}", g + 1)
    g = S.place(f"v_cmp_ngt_f32 vcc, 0x53800000, v{TMP(0)+1}", g + 1)
    g = S.place("s_cmp_lg_u64 vcc, 0", g + 2)
    g = S.place("s_cselect_b32 s66, 1, 0", g, force=True)
    g = S.place(f"v_mov_b32 v{TMP(0)}, s66", g + 1)
    gflag = S.place(f"ds_write_b32 v{FLG}, v{TMP(0)}", g + 1)
    assert gflag < bars[-1][0] - 8
    rl_ready = gflag + 1
    ET = [16, 20, 24, 28, 32, 36]
    tail = []
    ei = 0; si = 0
    prev = rl_ready
    def put(txt, g, tag=None):
        if tail or g is None or g >= len(S.gaps):
            tail.append(I(txt, tag)); return None
        r = S.place(txt, g, tag=tag)
        if r is None: tail.append(I(txt, tag))
        return r
    inc = lambda g, d: None if g is None else g + d
    mx = lambda a, b: None if a is None else max(a, b)
    for c in range(4):
        for t in range(3):
            for j in range(4):
                e = ET[ei % len(ET)]; ei += 1
                g = mx(prev, oend[(c, j, t)] + 8)
                if g is not None and g >= len(S.gaps) and not tail: tail.append(I("s_nop 7"))
                for k in range(4): g = put(f"v_accvgpr_read_b32 v{e+k}, a{OA(c & 1, j, t)+k}", g)
                if c < 2: assert g < cstart[((c + 2) * GPC, j)] + CH * t
                for k in range(4): g = put(f"v_mul_f32 v{e+k}, v{e+k}, v{RL(t)}", g)
                for k in range(2): g = put(f"v_cvt_pk_bf16_f32 v{e+k}, v{e+2*k}, v{e+2*k+1}", g)
                prev = g
                gw = put(f"ds_write_b64 v{STW}, {vq(e, 2)} offset:{j*32}", mx(inc(g, 1), 0) if j == 0 and c == 0 and t == 0 else mx(inc(g, 1), gw + 1 if gw is not None else 0))
            for h in range(2):
                r = SREG(si % 4); si += 1
                gw = put(f"ds_read_b128 {aq(r)}, v{STR} offset:{h*1152}", inc(gw, 1))
                if gw is None: tail.append(("st", r, t, h, c))
                else:
                    gs = put(f"buffer_store_dwordx4 {aq(r)}, v{STO}, {sO}, s{sROW+2*t+h} offen offset:{c*128} {cfg.st}", gw + 9, tag=("S", c))
    pro_vm = [x.tag for x in pro if isinstance(x, I) and x.kind == "vmem"]
    for g, need_t, freed in bars:
        tags = list(pro_vm)
        dst = []
        for k in range(g - 1):
            for x in S.gaps[k].vec:
                if x.kind == "vmem": tags.append(x.tag)
                if x.kind == "ds": dst.append(x.tag)
        assert tags.count(("T", need_t)) == 4, (g, need_t)
        idx = max(i for i, x in enumerate(tags) if x == ("T", need_t))
        S.gaps[g - 1].wait[0] = len(tags) - 1 - idx
        for k in range(g - 1, len(S.gaps)):
            for x in S.gaps[k].vec:
                assert not (x.kind == "ds" and x.tag in [("R", f) for f in freed])
        ids = [i for i, x in enumerate(dst) if x in [("R", f) for f in freed]]
        if ids: S.req_wait(g - 1, lgkm=len(dst) - 1 - max(ids))
        if g == bars[-1][0]: S.req_wait(g - 1, lgkm=min(15, sum(1 for k in range(gflag + 1, g - 1) for x in S.gaps[k].vec if x.kind == "ds")))
    if cfg.stamps:
        for g in (ones0, cstart[(0, 0)], cstart[(GPC, 0)], cstart[(3 * GPC, 0)]):
            S.place(stamp()[0], g)
    auto_lgkm(S, verbose=cfg.verbose)
    body = linearize(S)
    T2 = []
    pend = []
    for x in tail:
        if isinstance(x, tuple): pend.append(x); continue
        if pend and x.op == "ds_write_b64":
            T2.append(I("s_waitcnt lgkmcnt(0)"))
            for _, r, t, h, c in pend:
                T2.append(I(f"buffer_store_dwordx4 {aq(r)}, v{STO}, {sO}, s{sROW+2*t+h} offen offset:{c*128} {cfg.st}"))
            pend = []
        if x.kind == "vmem": T2.append(I("s_waitcnt lgkmcnt(0)"))
        T2.append(x)
    T2 += [I(x) for x in stamp()]
    T2.append(I(f"v_mov_b32 v4, {FLAGS}"))
    T2.append(I("ds_read_b128 v[8:11], v4"))
    T2.append(I("s_waitcnt lgkmcnt(1)"))
    for _, r, t, h, c in pend:
        T2.append(I(f"buffer_store_dwordx4 {aq(r)}, v{STO}, {sO}, s{sROW+2*t+h} offen offset:{c*128} {cfg.st}"))
    end = ["s_waitcnt lgkmcnt(0)", "v_or_b32 v8, v8, v9", "v_or3_b32 v8, v8, v10, v11", "s_nop 0", "v_readfirstlane_b32 s66, v8",
           f"s_cmp_gt_u32 s66, s{sMODE}", "s_cbranch_scc1 L_redo"]
    if cfg.stamps:
        end += stamp() + ["s_waitcnt vmcnt(0)"] + stamp()
        end += ["s_load_dwordx2 s[4:5], s[0:1], 40", "s_waitcnt lgkmcnt(0)", "s_mov_b32 s72, s4", "s_mov_b32 s73, s5",
                "s_mov_b32 s74, 0x10000000", "s_mov_b32 s75, 0x20000",
                "s_lshl_b32 s66, s2, 2", f"s_add_u32 s66, s66, s{sW}", f"s_mul_i32 s66, s66, {nst[0]*8}", "v_mov_b32 v1, s66"]
        for i in range(nst[0]):
            end += [f"v_mov_b32 v2, s{40+2*i}", f"v_mov_b32 v3, s{41+2*i}", f"buffer_store_dwordx2 v[2:3], v1, s[72:75], 0 offen offset:{8*i}"]
    end += ["L_end:", "s_endpgm"]
    redo = ["L_redo:", f"s_mov_b32 s{sMODE}, 1", "s_waitcnt vmcnt(0)", "s_barrier", "s_branch L_restart"]
    mp = ["L_maxpass:", "v_and_b32 v4, 15, v0", "v_lshrrev_b32 v5, 4, v0", "v_lshlrev_b32 v5, 4, v5", "v_lshl_or_b32 v4, v4, 9, v5",
          "s_mov_b32 s66, 0", "L_maxloop:"]
    for s in range(8): mp.append(f"buffer_load_dwordx4 {vq(64+4*s)}, v4, {sK}, s66 offen offset:{64*s}")
    mp.append("s_waitcnt vmcnt(0)")
    for t in range(3):
        for s in range(8):
            mp.append(f"v_mfma_f32_16x16x32_bf16 {vq(100+4*t)}, {vq(64+4*s)}, {aq(QA(t,s))}, {'0' if s == 0 else vq(100+4*t)}")
    mp.append("s_nop 7")
    for t in range(3):
        r = 100 + 4*t
        mp += [f"v_max3_f32 v{MINIT(t)}, v{r}, v{r+1}, v{MINIT(t)}", f"v_max3_f32 v{MINIT(t)}, v{r+2}, v{r+3}, v{MINIT(t)}"]
    mp += ["s_add_u32 s66, s66, 0x2000", f"s_cmp_lt_u32 s66, {KHEAD}", "s_cbranch_scc1 L_maxloop", "s_lshl_b32 s66, s66, 0", "s_branch L_main"]
    toI = lambda L: [x if isinstance(x, I) else I(x) for x in L]
    main = toI(pro) + body + T2 + toI(end)
    errs = check(main, "main") + check(toI(mp) + toI(mp[6:]), "mp")
    for e in errs[:20]: print("ERR", e, file=sys.stderr)
    if cfg.verbose:
        print("gaps", len(S.gaps), "est cycles", S.est_cycles(), "tail", len(T2), "pro", len(pro), file=sys.stderr)
    txt = f"; @launch grid=(256,1,1) block=(256,1,1) lds={LDS}\n"
    txt += f""".amdgcn_target "amdgcn-amd-amdhsa--gfx950"
.text
.globl {KNAME}
.p2align 8
.type {KNAME},@function
{KNAME}:
"""
    for x in main + toI(redo) + toI(mp):
        txt += ("" if x.kind == "label" else "    ") + x.text + "\n"
    txt += f""".section .rodata,"a"
.p2align 6
.amdhsa_kernel {KNAME}
  .amdhsa_next_free_vgpr 512
  .amdhsa_next_free_sgpr 96
  .amdhsa_accum_offset 256
  .amdhsa_group_segment_fixed_size 0
  .amdhsa_kernarg_size 48
  .amdhsa_user_sgpr_count 2
  .amdhsa_user_sgpr_kernarg_segment_ptr 1
  .amdhsa_system_sgpr_workgroup_id_x 1
.end_amdhsa_kernel
"""
    return txt, len(errs), nst[0]

if __name__ == "__main__":
    out = sys.argv[1]
    cfg = Cfg()
    for a in sys.argv[2:]:
        k, v = a.split("=", 1)
        cur = getattr(cfg, k)
        if isinstance(cur, bool): v = v == "1"
        elif isinstance(cur, int): v = int(v)
        else: v = v.replace("+", " ")
        setattr(cfg, k, v)
    txt, ne, ns = gen(cfg)
    open(out, "w").write(txt)
    print(out, "errors", ne, "stamps", ns)
```

```python
import sys, struct, argparse
from fw import *

KNAME = "standalone__mha_softmax__near_ridge_kernel"
QHEAD = 368 * 512
KHEAD = 512 * 512
NSLOT = 9
STG = NSLOT * 16384
STG_W = 2304
FLAGS = STG + 4 * STG_W
LDS = FLAGS + 64

def f2u(x): return struct.unpack("<I", struct.pack("<f", x))[0]

class Cfg:
    CH = 8
    ld = ""
    ldq = None
    st = ""
    stamps = False
    warm_code = False
    verbose = False
    probe = -1

def dump(S, a, b):
    for i in range(a, min(b, len(S.gaps))):
        g = S.gaps[i]
        print(i, g.used(), g.wait, [x.op for x in g.sc], [x.text[:28] for x in g.vec], file=sys.stderr)
def vq(b, n=4): return f"v[{b}:{b+n-1}]"
def aq(b, n=4): return f"a[{b}:{b+n-1}]"

def gen(cfg):
    CH = cfg.CH
    TG = CH // 4
    ldq = cfg.ld if cfg.ldq is None else cfg.ldq
    PH = lambda kb, t: 64 + (kb * 3 + t) * 4
    TMP = lambda t: 4 + 4 * t
    NEGM = lambda t: 16 + 4 * t
    TU = lambda kb, t: PH(14, t) if (kb & 1 and kb <= 11) else TMP(t)
    KADDR = lambda w, q: 28 + 4 * w + q
    VADDR = lambda w, j: 40 + 4 * w + j
    KDMA = lambda i: 52 + i
    VDMA = lambda i: 56 + i
    STW, STR, STO, FLG = 60, 61, 62, 63
    RL = lambda t: 1 + t
    MINIT = lambda t: 1 + t
    QA = lambda t, s: (t * 8 + s) * 4
    FSZ = max(CH, 8) * 4
    FR = lambda st, i: 96 + st * FSZ + i * 4
    ONES = 96 + 2 * FSZ
    SREG = lambda i: ONES + 4 + 4 * i
    OA = lambda st, j, t: st * 48 + (j * 3 + t) * 4
    sQ, sK, sV, sO = "s[12:15]", "s[16:19]", "s[20:23]", "s[24:27]"
    sW, sWQ, sROW, sOFF, sMODE = 28, 29, 30, 36, 37
    nst = [0]
    def stamp():
        if not cfg.stamps: return []
        i = nst[0]; nst[0] += 1
        return [f"s_memrealtime s[{40+2*i}:{41+2*i}]"]

    pro = []
    E = lambda *a: pro.extend(a)
    E("s_cmp_ge_u32 s2, 256", "s_cbranch_scc1 L_end")
    E(*stamp())
    E("s_load_dwordx4 s[4:7], s[0:1], 0", "s_load_dwordx4 s[8:11], s[0:1], 16")
    E("v_lshrrev_b32 v1, 6, v0", f"s_mov_b32 s{sMODE}, 0", f"v_readfirstlane_b32 s{sW}, v1")
    E("s_and_b32 s64, s2, 7", "s_lshr_b32 s65, s2, 4", "s_lshl_b32 s65, s65, 3", "s_add_u32 s64, s64, s65",
      "s_bfe_u32 s65, s2, 0x10003",
      "s_mul_i32 s65, s65, 192", f"s_mul_i32 s66, s{sW}, 48", "s_add_u32 s65, s65, s66",
      f"s_lshl_b32 s{sROW}, s65, 9", f"s_lshl_b32 s{sWQ}, s{sW}, 12")
    for i in range(1, 6): E(f"s_add_u32 s{sROW+i}, s{sROW}, {4096*i}")
    E(f"s_mul_i32 s66, s64, {QHEAD}", "s_lshl_b32 s67, s64, 18")
    E(f"s_mov_b32 s14, {QHEAD}", "s_mov_b32 s15, 0x20000", f"s_mov_b32 s18, {KHEAD}", "s_mov_b32 s19, 0x20000",
      f"s_mov_b32 s22, {KHEAD}", "s_mov_b32 s23, 0x20000", f"s_mov_b32 s26, {QHEAD}", "s_mov_b32 s27, 0x20000")
    c = f2u(1.4426950408889634 / 16.0)
    E(f"s_mov_b32 s38, {c:#x}", f"s_mov_b32 s39, {c:#x}")
    E("s_waitcnt lgkmcnt(0)")
    E("s_add_u32 s12, s4, s66", "s_addc_u32 s13, s5, 0", "s_add_u32 s16, s6, s67", "s_addc_u32 s17, s7, 0",
      "s_add_u32 s20, s8, s67", "s_addc_u32 s21, s9, 0", "s_add_u32 s24, s10, s66", "s_addc_u32 s25, s11, 0")
    E("L_restart:")
    E("v_mbcnt_lo_u32_b32 v0, -1, 0", "v_mbcnt_hi_u32_b32 v0, -1, v0")
    QD = lambda p: 240 + p
    E("v_lshrrev_b32 v1, 5, v0", "v_and_b32 v2, 31, v0", "v_xor_b32 v2, v2, v1", "v_lshlrev_b32 v2, 4, v2",
      f"v_lshl_or_b32 v{QD(0)}, v1, 9, v2")
    for p in range(1, 8): E(f"v_xor_b32 v{QD(p)}, {32*p}, v{QD(0)}")
    vm = []
    def dma(voff, srd, soff, off, flag, tag):
        return I(f"buffer_load_dwordx4 v{voff}, {srd}, s{soff} offen offset:{off} {flag} lds", tag)
    for t in range(3):
        for h in range(2):
            E(f"s_add_u32 m0, s{sWQ}, {(3 + 2*t + h) * 16384}")
            if t == 0 and h == 0:
                E(f"s_and_b32 s66, s{sW}, 1")
            elif t == 0 and h == 1:
                E(f"s_lshl_b32 s66, s66, 7")
            else:
                E("s_nop 0")
            for i in range(4):
                E(dma(QD(4*h+i), sQ, sROW + 2*t + h, i*1024, ldq, ("Q", t)))
    E(f"s_or_b32 s66, s66, s{sWQ}")
    for i in range(4): E(f"v_xor_b32 v{KDMA(i)}, s66, v{QD(i)}")
    def tile_ops(i):
        slot = i % NSLOT
        if i < 16:
            so, regs, srd = i * 16384, KDMA, sK
        else:
            vt = i - 16
            so, regs, srd = (vt % 4) * 65536 + (vt // 4) * 128, VDMA, sV
        return ([I(f"s_add_u32 m0, s{sWQ}, {slot*16384}"), I(f"s_mov_b32 s{sOFF}, {so}")],
                [dma(regs(k), srd, sOFF, k*1024, cfg.ld, ("T", i)) for k in range(4)])
    for i in range(3):
        sc, d = tile_ops(i); E(*sc); E(*d)
    if cfg.warm_code:
        E("s_getpc_b64 s[68:69]", "L_pc:", f"s_lshl_b32 s66, s{sW}, 13", "v_lshlrev_b32 v1, 7, v0", "v_add_u32 v1, s66, v1",
          "v_min_u32 v1, L_end-L_pc, v1")
        E(I("global_load_dword a255, v1, s[68:69]", ("W", 0)))
    E("v_and_b32 v1, 15, v0", "v_lshrrev_b32 v2, 4, v0")
    E("v_xor_b32 v3, v1, v2", "v_lshlrev_b32 v3, 4, v3")
    E(f"v_lshl_or_b32 v{KADDR(0,0)}, v1, 9, v3")
    for q in range(1, 4): E(f"v_xor_b32 v{KADDR(0,q)}, {q << 6}, v{KADDR(0,0)}")
    for w in range(1, 3):
        for q in range(4): E(f"v_add_u32 v{KADDR(w,q)}, {w*65536:#x}, v{KADDR(0,q)}")
    QR = lambda q: 248 + q
    E("v_and_b32 v4, 7, v0", "v_lshl_or_b32 v3, v4, 9, v3", "v_bfe_u32 v5, v0, 3, 1", "v_lshl_or_b32 v3, v5, 14, v3",
      f"s_add_u32 s66, s{sWQ}, {3*16384}", f"v_add_u32 v{QR(0)}, s66, v3")
    for q in range(1, 4): E(f"v_xor_b32 v{QR(q)}, {q << 6}, v{QR(0)}")
    E(f"s_mul_i32 s66, s{sW}, {STG_W}", f"s_add_u32 s66, s66, {STG}",
      "v_mul_u32_u24 v5, 144, v1", "v_lshl_add_u32 v5, v2, 3, v5", f"v_add_u32 v{STW}, s66, v5")
    E("v_lshrrev_b32 v6, 3, v0", "v_mul_u32_u24 v5, 144, v6", "v_lshl_add_u32 v5, v4, 4, v5", f"v_add_u32 v{STR}, s66, v5")
    E("v_lshlrev_b32 v5, 4, v4", f"v_lshl_or_b32 v{STO}, v6, 9, v5")
    E("v_lshlrev_b32 v5, 5, v2", f"v_xor_b32 v5, v5, v{STO}", f"s_lshl_b32 s66, s{sW}, 14", f"v_add_u32 v{VDMA(0)}, s66, v5")
    for i in range(1, 4): E(f"v_add_u32 v{VDMA(i)}, {3072*i:#x}, v{VDMA(0)}")
    E("v_lshrrev_b32 v5, 2, v0", "v_and_b32 v7, 3, v6", "v_lshlrev_b32 v7, 5, v7", "v_lshl_or_b32 v5, v5, 7, v7",
      "v_and_b32 v7, 3, v0", f"v_lshl_or_b32 v{VADDR(0,0)}, v7, 3, v5")
    for j in range(1, 4): E(f"v_xor_b32 v{VADDR(0,j)}, {j << 5}, v{VADDR(0,0)}")
    for w in range(1, 3):
        for j in range(4): E(f"v_add_u32 v{VADDR(w,j)}, {w*65536:#x}, v{VADDR(0,j)}")
    E(f"s_lshl_b32 s66, s{sW}, 2", f"s_add_u32 s66, s66, {FLAGS}", f"v_mov_b32 v{FLG}, s66")
    E("v_mov_b32 v5, 0x3f803f80")
    for i in range(4): E(f"v_accvgpr_write_b32 a{ONES+i}, v5")
    for t in range(3): E(f"v_mov_b32 v{MINIT(t)}, 0xff800000")
    def vmwait(insts, tag):
        tags = [x.tag for x in insts if isinstance(x, I) and x.kind == "vmem"]
        idx = max(i for i, x in enumerate(tags) if x == tag)
        return len(tags) - 1 - idx
    RAW = 64
    for t in range(3):
        E(f"s_waitcnt vmcnt({vmwait(pro, ('Q', t))})")
        if t == 0: E(*stamp())
        if t == 2: E(*stamp())
        for s in range(8):
            E(f"ds_read_b128 {vq(RAW + 4*s)}, v{QR(s & 3)} offset:{(s >> 2) * 256}")
        if t < 2:
            for q in range(4): E(f"v_add_u32 v{QR(q)}, 0x8000, v{QR(q)}")
        dl = []
        for i in (3 + 2*t, 4 + 2*t):
            sc, d = tile_ops(i); dl.append(sc + d[:1]); dl += [[x] for x in d[1:]]
        for s in range(8):
            if s < 2: E(f"s_waitcnt lgkmcnt({7 if s == 0 else 0})")
            T0 = 100 + (s & 1) * 8
            for k in range(4):
                r = RAW + 4*s + k
                E(f"v_lshlrev_b32 v{T0+2*k}, 16, v{r}", f"v_and_b32 v{T0+2*k+1}, 0xffff0000, v{r}")
            for k in range(4):
                E(f"v_pk_mul_f32 {vq(T0+2*k, 2)}, {vq(T0+2*k, 2)}, s[38:39]")
            for k in range(4):
                E(f"v_cvt_pk_bf16_f32 v{T0+2*k}, v{T0+2*k}, v{T0+2*k+1}")
            for k in range(4):
                E(f"v_accvgpr_write_b32 a{QA(t,s)+k}, v{T0+2*k}")
            if s >= 1:
                E(*dl.pop(0))
                if s == 7: E(*dl.pop(0))
            if t == 2 and s == 4:
                E(f"s_waitcnt vmcnt({vmwait(pro, ('T', 0))})", "s_barrier")
                for s2 in range(8):
                    E(I(f"ds_read_b128 {aq(FR(0, s2))}, v{KADDR(0, s2 & 3)} offset:{(s2 >> 2) * 256}", ("R", 0)))
    E(f"s_cmp_lg_u32 s{sMODE}, 0", "s_cbranch_scc1 L_maxpass", "L_main:")
    E(*stamp())
    E("s_waitcnt lgkmcnt(0)")

    S = Stream()
    chain_end = {}
    ustart = []
    for u in range(32):
        kb, kt = u >> 1, u & 1
        ustart.append(len(S.gaps))
        for t in range(3):
            D = vq(PH(kb, t) if kt == 0 else TU(kb, t))
            for s in range(8):
                C = D if s else ("0" if u == 0 else vq(NEGM(t)))
                g = S.mfma(f"v_mfma_f32_16x16x32_bf16 {D}, {aq(FR(u & 1, s))}, {aq(QA(t, s))}, {C}")
            chain_end[(u, t)] = g
    ones0 = len(S.gaps)
    LQ = lambda t: NEGM(t)
    ones_end = {}
    for t in range(3):
        for kb in range(16):
            g = S.mfma(f"v_mfma_f32_16x16x32_bf16 {vq(LQ(t))}, {aq(ONES)}, {vq(PH(kb, t))}, {'0' if kb == 0 else vq(LQ(t))}")
        ones_end[t] = g
    NG = 16 // TG
    GPC = 4 // TG
    cstart = {}
    oend = {}
    cu = 0
    for gi in range(NG):
        c, h = gi // GPC, gi % GPC
        for j in range(4):
            cstart[(gi, j)] = len(S.gaps)
            for t in range(3):
                D = aq(OA(c & 1, j, t))
                for k in range(CH):
                    C = "0" if (h == 0 and k == 0) else D
                    g = S.mfma(f"v_mfma_f32_16x16x32_bf16 {D}, {aq(FR(cu & 1, k))}, {vq(PH(h*CH + k, t))}, {C}")
                oend[(c, j, t)] = g
            cu += 1
    UL = 3 * CH
    bars = []
    def lds_off(tile, off):
        a = (tile % NSLOT) * 16384 + off
        return a >> 16, a & 0xffff
    for u in range(1, 32):
        tile, kt = u >> 1, u & 1
        g0 = ustart[u - 1]
        if kt == 0: bars.append((g0, tile, [tile - 1]))
        for s in range(8):
            w, o = lds_off(tile, kt * 8192 + (s >> 2) * 256)
            S.place(f"ds_read_b128 {aq(FR(u & 1, s))}, v{KADDR(w, s & 3)} offset:{o}", g0 + (s & 3) + 8 * (s >> 2), force=True, tag=("R", tile))
    cu = 0
    for gi in range(NG):
        for j in range(4):
            g0 = cstart[(gi, j)] - UL
            if j == 0:
                bars.append((g0, 16 + gi * TG + TG - 1, [15] if gi == 0 else [16 + (gi - 1) * TG + x for x in range(TG)]))
            for k in range(CH):
                tile = 16 + gi * TG + k // 4
                for kt in range(2):
                    w, o = lds_off(tile, (k % 4) * 4096 + kt * 2048)
                    S.place(f"ds_read_b64_tr_b16 {aq(FR(cu & 1, k) + 2 * kt, 2)}, v{VADDR(w, j)} offset:{o}", g0 + 2 * k + kt, force=True, tag=("R", tile))
            cu += 1
    free_at = {}
    for g, need_t, freed in bars:
        S.place("s_barrier", g, force=True)
        S.req_wait(g - 1, vm=63)
        for f in freed: free_at[f] = g
    prev = 0
    for i in range(NSLOT, 32):
        sc, d = tile_ops(i)
        g = max(free_at[i - NSLOT], prev + 1)
        g = S.place(sc[0], g); g = S.place(sc[1], g + 1)
        for x in d:
            if g < ones0:
                while (g % 24) not in (16, 19): g += 1
            g = S.place(x, g); prev = g; g += 2
    eready = {}
    X, Y = PH(15, 0), PH(15, 1)
    for t in range(3):
        r = PH(0, t); x, y = X + t, Y + t
        g = chain_end[(0, t)] + 4
        dl = ustart[1] + 8 * t - 2
        seq = [(f"v_max3_f32 v{x}, v{r}, v{r+1}, v{r+2}", 0), (f"v_max3_f32 v{x}, v{x}, v{r+3}, v{MINIT(t)}", 1), (f"v_mov_b32 v{y}, v{x}", 0),
               (f"v_permlane32_swap_b32 v{x}, v{y}", 2), (f"v_max_f32 v{x}, v{x}, v{y}", 1), (f"v_mov_b32 v{y}, v{x}", 0),
               (f"v_permlane16_swap_b32 v{x}, v{y}", 2), (f"v_max_f32 v{x}, v{x}, v{y}", 1)]
        for txt, d in seq:
            g = S.place(txt, g + d, force=True)
        for k in range(4): g = S.place(f"v_sub_f32 v{NEGM(t)+k}, 0, v{x}", g + (k & 1 ^ 1), force=True)
        assert g <= dl, (g, dl)
        for k in range(4): g = S.place(f"v_sub_f32 v{r+k}, v{r+k}, v{x}", g)
        eready[(0, t)] = g + 1
    eg = {}
    prev = 0
    for u in range(32):
        kb, kt = u >> 1, u & 1
        for t in range(3):
            r = PH(kb, t) if kt == 0 else TU(kb, t)
            g = max(eready.get((u, t), chain_end[(u, t)] + 5), prev)
            for k in range(4):
                g = S.place(f"v_exp_f32 v{r+k}, v{r+k}", g); eg[(u, t, k)] = g
            prev = g
    prev = 0
    for u in range(32):
        kb, kt = u >> 1, u & 1
        for t in range(3):
            r = PH(kb, t) if kt == 0 else TU(kb, t)
            for k in range(2):
                g = max(eg[(u, t, 2*k+1)] + 1, prev)
                g = S.place(f"v_cvt_pk_bf16_f32 v{PH(kb,t)+2*kt+k}, v{r+2*k}, v{r+2*k+1}", g); prev = g
            if kt == 1:
                nxt = [v for v in range(u + 1, 32) if (PH(v >> 1, t) if v & 1 == 0 else TU(v >> 1, t)) == r]
                if nxt: assert g < ustart[nxt[0]] + 8 * t, ("temp quad reuse", u, t, g)
            if kt == 1: assert g < ones0 + 16 * t + kb - 1, "P ready for ones"
    g = 0
    for t in range(3):
        g = S.place(f"v_rcp_f32 v{RL(t)}, v{LQ(t)}", max(ones_end[t] + 8, g))
    g = S.place(f"v_max3_f32 v{TMP(0)}, v{LQ(0)}, v{LQ(1)}, v{LQ(2)}", g + 1)
    g = S.place(f"v_add_f32 v{TMP(0)+1}, v{LQ(0)}, v{LQ(1)}", g + 1)
    g = S.place(f"v_add_f32 v{TMP(0)+1}, v{TMP(0)+1}, v{LQ(2)}", g + 1)
    g = S.place(f"v_cmp_ngt_f32 vcc, 0x53800000, v{TMP(0)+1}", g + 1)
    g = S.place("s_cmp_lg_u64 vcc, 0", g + 2)
    g = S.place("s_cselect_b32 s66, 1, 0", g, force=True)
    g = S.place(f"v_mov_b32 v{TMP(0)}, s66", g + 1)
    gflag = S.place(f"ds_write_b32 v{FLG}, v{TMP(0)}", g + 1)
    assert gflag < bars[-1][0] - 8
    rl_ready = gflag + 1
    ET = [16, 20, 24, 28, 32, 36]
    tail = []
    ei = 0; si = 0
    prev = rl_ready
    def put(txt, g, tag=None):
        if tail or g is None or g >= len(S.gaps):
            tail.append(I(txt, tag)); return None
        r = S.place(txt, g, tag=tag)
        if r is None: tail.append(I(txt, tag))
        return r
    inc = lambda g, d: None if g is None else g + d
    mx = lambda a, b: None if a is None else max(a, b)
    for c in range(4):
        for t in range(3):
            for j in range(4):
                e = ET[ei % len(ET)]; ei += 1
                g = mx(prev, oend[(c, j, t)] + 8)
                if g is not None and g >= len(S.gaps) and not tail: tail.append(I("s_nop 7"))
                for k in range(4): g = put(f"v_accvgpr_read_b32 v{e+k}, a{OA(c & 1, j, t)+k}", g)
                if c < 2: assert g < cstart[((c + 2) * GPC, j)] + CH * t
                for k in range(4): g = put(f"v_mul_f32 v{e+k}, v{e+k}, v{RL(t)}", g)
                for k in range(2): g = put(f"v_cvt_pk_bf16_f32 v{e+k}, v{e+2*k}, v{e+2*k+1}", g)
                prev = g
                gw = put(f"ds_write_b64 v{STW}, {vq(e, 2)} offset:{j*32}", mx(inc(g, 1), 0) if j == 0 and c == 0 and t == 0 else mx(inc(g, 1), gw + 1 if gw is not None else 0))
            for h in range(2):
                r = SREG(si % 4); si += 1
                gw = put(f"ds_read_b128 {aq(r)}, v{STR} offset:{h*1152}", inc(gw, 1))
                if gw is None: tail.append(("st", r, t, h, c))
                else:
                    gs = put(f"buffer_store_dwordx4 {aq(r)}, v{STO}, {sO}, s{sROW+2*t+h} offen offset:{c*128} {cfg.st}", gw + 9, tag=("S", c))
    pro_vm = [x.tag for x in pro if isinstance(x, I) and x.kind == "vmem"]
    for g, need_t, freed in bars:
        tags = list(pro_vm)
        dst = []
        for k in range(g - 1):
            for x in S.gaps[k].vec:
                if x.kind == "vmem": tags.append(x.tag)
                if x.kind == "ds": dst.append(x.tag)
        assert tags.count(("T", need_t)) == 4, (g, need_t)
        idx = max(i for i, x in enumerate(tags) if x == ("T", need_t))
        S.gaps[g - 1].wait[0] = len(tags) - 1 - idx
        for k in range(g - 1, len(S.gaps)):
            for x in S.gaps[k].vec:
                assert not (x.kind == "ds" and x.tag in [("R", f) for f in freed])
        ids = [i for i, x in enumerate(dst) if x in [("R", f) for f in freed]]
        if ids: S.req_wait(g - 1, lgkm=len(dst) - 1 - max(ids))
        if g == bars[-1][0]: S.req_wait(g - 1, lgkm=min(15, sum(1 for k in range(gflag + 1, g - 1) for x in S.gaps[k].vec if x.kind == "ds")))
    if cfg.stamps:
        for g in (ones0, cstart[(0, 0)], cstart[(GPC, 0)], cstart[(3 * GPC, 0)]):
            S.place(stamp()[0], g)
    auto_lgkm(S, verbose=cfg.verbose)
    body = linearize(S)
    T2 = []
    pend = []
    for x in tail:
        if isinstance(x, tuple): pend.append(x); continue
        if pend and x.op == "ds_write_b64":
            T2.append(I("s_waitcnt lgkmcnt(0)"))
            for _, r, t, h, c in pend:
                T2.append(I(f"buffer_store_dwordx4 {aq(r)}, v{STO}, {sO}, s{sROW+2*t+h} offen offset:{c*128} {cfg.st}"))
            pend = []
        if x.kind == "vmem": T2.append(I("s_waitcnt lgkmcnt(0)"))
        T2.append(x)
    T2 += [I(x) for x in stamp()]
    T2.append(I(f"v_mov_b32 v4, {FLAGS}"))
    T2.append(I("ds_read_b128 v[8:11], v4"))
    T2.append(I("s_waitcnt lgkmcnt(1)"))
    for _, r, t, h, c in pend:
        T2.append(I(f"buffer_store_dwordx4 {aq(r)}, v{STO}, {sO}, s{sROW+2*t+h} offen offset:{c*128} {cfg.st}"))
    end = ["s_waitcnt lgkmcnt(0)", "v_or_b32 v8, v8, v9", "v_or3_b32 v8, v8, v10, v11", "s_nop 0", "v_readfirstlane_b32 s66, v8",
           f"s_cmp_gt_u32 s66, s{sMODE}", "s_cbranch_scc1 L_redo"]
    if cfg.stamps:
        end += stamp() + ["s_waitcnt vmcnt(0)"] + stamp()
        if cfg.probe >= 0:
            p = cfg.probe
            end += ["s_waitcnt lgkmcnt(0)", f"s_sub_u32 s66, s{40+2*p}, s40", "s_lshl_b32 s66, s66, 2", "s_add_u32 s66, s66, 6000",
                    "L_spin:", "s_memrealtime s[70:71]", "s_waitcnt lgkmcnt(0)", "s_sub_u32 s67, s70, s40", "s_cmp_lt_u32 s67, s66", "s_cbranch_scc1 L_spin"]
        end += ["s_load_dwordx2 s[4:5], s[0:1], 40", "s_waitcnt lgkmcnt(0)", "s_mov_b32 s72, s4", "s_mov_b32 s73, s5",
                "s_mov_b32 s74, 0x10000000", "s_mov_b32 s75, 0x20000",
                "s_lshl_b32 s66, s2, 2", f"s_add_u32 s66, s66, s{sW}", f"s_mul_i32 s66, s66, {nst[0]*8}", "v_mov_b32 v1, s66"]
        for i in range(nst[0]):
            end += [f"v_mov_b32 v2, s{40+2*i}", f"v_mov_b32 v3, s{41+2*i}", f"buffer_store_dwordx2 v[2:3], v1, s[72:75], 0 offen offset:{8*i}"]
    end += ["L_end:", "s_endpgm"]
    redo = ["L_redo:", f"s_mov_b32 s{sMODE}, 1", "s_waitcnt vmcnt(0)", "s_barrier", "s_branch L_restart"]
    mp = ["L_maxpass:", "v_and_b32 v4, 15, v0", "v_lshrrev_b32 v5, 4, v0", "v_lshlrev_b32 v5, 4, v5", "v_lshl_or_b32 v4, v4, 9, v5",
          "s_mov_b32 s66, 0", "L_maxloop:"]
    for s in range(8): mp.append(f"buffer_load_dwordx4 {vq(64+4*s)}, v4, {sK}, s66 offen offset:{64*s}")
    mp.append("s_waitcnt vmcnt(0)")
    for t in range(3):
        for s in range(8):
            mp.append(f"v_mfma_f32_16x16x32_bf16 {vq(100+4*t)}, {vq(64+4*s)}, {aq(QA(t,s))}, {'0' if s == 0 else vq(100+4*t)}")
    mp.append("s_nop 7")
    for t in range(3):
        r = 100 + 4*t
        mp += [f"v_max3_f32 v{MINIT(t)}, v{r}, v{r+1}, v{MINIT(t)}", f"v_max3_f32 v{MINIT(t)}, v{r+2}, v{r+3}, v{MINIT(t)}"]
    mp += ["s_add_u32 s66, s66, 0x2000", f"s_cmp_lt_u32 s66, {KHEAD}", "s_cbranch_scc1 L_maxloop", "s_lshl_b32 s66, s66, 0", "s_branch L_main"]
    toI = lambda L: [x if isinstance(x, I) else I(x) for x in L]
    main = toI(pro) + body + T2 + toI(end)
    errs = check(main, "main") + check(toI(mp) + toI(mp[6:]), "mp")
    for e in errs[:20]: print("ERR", e, file=sys.stderr)
    if cfg.verbose:
        print("gaps", len(S.gaps), "est cycles", S.est_cycles(), "tail", len(T2), "pro", len(pro), file=sys.stderr)
    txt = f"; @launch grid=(256,1,1) block=(256,1,1) lds={LDS}\n"
    txt += f""".amdgcn_target "amdgcn-amd-amdhsa--gfx950"
.text
.globl {KNAME}
.p2align 8
.type {KNAME},@function
{KNAME}:
"""
    for x in main + toI(redo) + toI(mp):
        txt += ("" if x.kind == "label" else "    ") + x.text + "\n"
    txt += f""".section .rodata,"a"
.p2align 6
.amdhsa_kernel {KNAME}
  .amdhsa_next_free_vgpr 512
  .amdhsa_next_free_sgpr 96
  .amdhsa_accum_offset 256
  .amdhsa_group_segment_fixed_size 0
  .amdhsa_kernarg_size 48
  .amdhsa_user_sgpr_count 2
  .amdhsa_user_sgpr_kernarg_segment_ptr 1
  .amdhsa_system_sgpr_workgroup_id_x 1
.end_amdhsa_kernel
"""
    return txt, len(errs), nst[0]

if __name__ == "__main__":
    out = sys.argv[1]
    cfg = Cfg()
    for a in sys.argv[2:]:
        k, v = a.split("=", 1)
        cur = getattr(cfg, k)
        if isinstance(cur, bool): v = v == "1"
        elif isinstance(cur, int): v = int(v)
        else: v = v.replace("+", " ")
        setattr(cfg, k, v)
    txt, ne, ns = gen(cfg)
    open(out, "w").write(txt)
    print(out, "errors", ne, "stamps", ns)
```
